```python
import torch

def _softmax(x, axis=-1):
    return torch.softmax(x, dim=axis)
def _gelu(x):
    return torch.nn.functional.gelu(x, approximate="tanh")
def _silu(x):
    return torch.nn.functional.silu(x)
def _sigmoid(x):
    return torch.sigmoid(x)
def _layernorm(x, axis=-1, eps=1e-5):
    m = x.mean(dim=axis, keepdim=True)
    v = x.var(dim=axis, keepdim=True, unbiased=False)
    return (x - m) / torch.sqrt(v + eps)
def _scatter_add(tgt, idx, src, axis=0):
    return tgt.clone().index_add_(axis, idx, src)
def _segment_sum(src, seg, n):
    out = torch.zeros((n,) + src.shape[1:], dtype=src.dtype)
    return out.index_add_(0, seg, src)
def _pad(x, pw):
    flat = tuple(v for pair in reversed(pw) for v in pair)
    return torch.nn.functional.pad(x, flat)

kernel_name = 'recurrent_scan__mha_block_cached__glu_gated_bilinear__prompt'

def setup_inputs():

    _w = (lambda a: (lambda t: t.to(torch.bfloat16) if t.is_floating_point() else t)(torch.as_tensor(a)))
    def _A_setup():
        B, Sq, D = 1, 2048, 576
        H, Sk, Dh = 32, 2048, 128
        return {
            "x": _w((lambda *s: torch.randn(*s, dtype=torch.bfloat16) * 0.05)(B, Sq, D)),
            "k_cache": _w((lambda *s: torch.randn(*s, dtype=torch.bfloat16) * 1.6)(B, H, Sk, Dh)),
            "v_cache": _w((lambda *s: torch.randn(*s, dtype=torch.bfloat16) * 1.6)(B, H, Sk, Dh)),
            "wq": _w((lambda *s: torch.randn(*s, dtype=torch.bfloat16) * 1.6)(D, H * Dh) * (D ** -0.5)),
            "wo": _w((lambda *s: torch.randn(*s, dtype=torch.bfloat16) * 1.6)(H * Dh, D) * ((H * Dh) ** -0.5)),
        }
    _A_in = _A_setup()

    def _B_setup():
        B, S, D, F = 1, 2048, 576, 4608
        return {
            "x": _w((lambda *s: torch.randn(*s, dtype=torch.bfloat16) * 0.05)(B, S, D)),
            "w_gate": _w((lambda *s: torch.randn(*s, dtype=torch.bfloat16) * 0.2)(D, F) * (D ** -0.5)),
            "w_up": _w((lambda *s: torch.randn(*s, dtype=torch.bfloat16) * 0.2)(D, F) * (D ** -0.5)),
            "w_down": _w((lambda *s: torch.randn(*s, dtype=torch.bfloat16) * 0.2)(F, D) * (F ** -0.5)),
        }
    _B_in = _B_setup()

    return {
        "A_x": _A_in["x"],
        "A_k_cache": _A_in["k_cache"],
        "A_v_cache": _A_in["v_cache"],
        "A_wq": _A_in["wq"],
        "A_wo": _A_in["wo"],
        "B_x": _B_in["x"],
        "B_w_gate": _B_in["w_gate"],
        "B_w_up": _B_in["w_up"],
        "B_w_down": _B_in["w_down"],
    }

def reference(A_x, A_k_cache, A_v_cache, A_wq, A_wo, B_x, B_w_gate, B_w_up, B_w_down):
    def _A_ref(x, k_cache, v_cache, wq, wo):
        B, Sq, D = x.shape
        H, Dh = 32, 128
        q = (lambda x, *d: x.permute(*d))((x @ wq).reshape(B, Sq, H, Dh), 0, 2, 1, 3)
        scores = torch.einsum("bhqd,bhkd->bhqk", q, k_cache) * (Dh ** -0.5)
        p = _softmax(scores, axis=-1)
        o = torch.einsum("bhqk,bhkd->bhqd", p, v_cache)
        return (lambda x, *d: x.permute(*d))(o, 0, 2, 1, 3).reshape(B, Sq, H * Dh) @ wo

    def _B_ref(x, w_gate, w_up, w_down):
        g = torch.einsum("bsd,df->bsf", x, w_gate)
        u = torch.einsum("bsd,df->bsf", x, w_up)
        h = g * u
        return torch.einsum("bsf,fd->bsd", h, w_down)

    x = A_x
    xn = _layernorm(x, axis=-1)
    s = _A_ref(xn, A_k_cache, A_v_cache, A_wq, A_wo)
    g = _silu(_B_ref(xn, B_w_gate, B_w_up, B_w_down))
    return x + s * g
```

```python
import re

_REG = re.compile(r"^-?(?:abs\()?\|?([vas])(?:(\d+)|\[(\d+):(\d+)\])\|?\)?$")

TRANS = ("v_exp_f32", "v_log_f32", "v_rcp_f32", "v_rsq_f32", "v_sqrt_f32", "v_sin_f32", "v_cos_f32")


def regs_of(op):
    op = op.strip()
    if op in ("vcc", "vcc_lo", "vcc_hi"):
        return {("s", "vcc")}
    if op in ("exec", "exec_lo", "exec_hi"):
        return {("s", "exec")}
    if op == "m0":
        return {("s", "m0")}
    m = _REG.match(op)
    if not m:
        return set()
    f = m.group(1)
    if m.group(2) is not None:
        return {(f, int(m.group(2)))}
    return {(f, i) for i in range(int(m.group(3)), int(m.group(4)) + 1)}


def R(f, lo, n=1):
    return f"{f}{lo}" if n == 1 else f"{f}[{lo}:{lo + n - 1}]"


def V(lo, n=1): return R("v", lo, n)
def A(lo, n=1): return R("a", lo, n)
def S(lo, n=1): return R("s", lo, n)


class I:
    def __init__(self, text, comment=None):
        self.text = text
        self.comment = comment
        self.pre_lgkm = None
        self.pre_vm = None
        self.post_lgkm = None
        self.post_vm = None
        self.pre_nop = 0
        self.rd = set(); self.wr = set()
        self.srcC = set(); self.srcAB = set(); self.passes = 0
        self.cls = "other"
        self.keep = None
        self.tag = None
        self.wide_store = set()
        self.parse()

    def parse(self):
        t = self.text.strip()
        if t.endswith(":"):
            self.cls = "label"; return
        if t.startswith("@"):
            self.cls = "pseudo"; return
        parts = t.split(None, 1)
        op = parts[0]
        rest = parts[1] if len(parts) > 1 else ""
        self.op = op
        ops = [x.strip() for x in rest.split(",")] if rest else []
        mods = ""
        if ops:
            last = ops[-1].split(None, 1)
            ops[-1] = last[0]
            mods = last[1] if len(last) > 1 else ""
        self.ops = ops; self.mods = mods
        rg = [regs_of(o) for o in ops]
        allr = set().union(*rg) if rg else set()
        if op.startswith("v_mfma"):
            self.cls = "mfma"
            self.passes = 8 if "32x32x16" in op else 4
            self.wr = rg[0]; self.srcAB = rg[1] | rg[2]; self.srcC = rg[3]
            self.rd = self.srcAB | self.srcC
        elif op.startswith("v_cmp"):
            self.cls = "valu"; self.wr = rg[0]; self.rd = set().union(*rg[1:])
        elif op.startswith("v_permlane") and "swap" in op:
            self.cls = "valu"; self.wr = allr; self.rd = allr
        elif op.startswith("v_"):
            self.cls = "trans" if op.replace("_e32", "").replace("_e64", "") in TRANS else "valu"
            self.wr = set(rg[0]); self.rd = set().union(*rg[1:]) if len(rg) > 1 else set()
            if op.startswith(("v_fmac", "v_dot2c", "v_mac")):
                self.rd |= rg[0]
            if op.startswith(("v_add_co", "v_sub_co", "v_addc_co", "v_subb_co", "v_subrev_co")):
                self.wr |= rg[1]
                self.rd = set().union(*rg[2:])
            if op.startswith("v_cndmask") and len(ops) == 3:
                self.rd |= {("s", "vcc")}
        elif op.startswith("ds_read") or op.startswith("ds_bpermute") or op.startswith("ds_swizzle"):
            self.cls = "dsr"; self.wr = rg[0]; self.rd = set().union(*rg[1:])
        elif op.startswith("ds_"):
            self.cls = "dsw"; self.rd = allr
        elif op.startswith(("buffer_load", "global_load")):
            if " lds" in (" " + mods) or "_lds_" in op:
                self.cls = "dma"; self.rd = allr | {("s", "m0")}
            else:
                self.cls = "vld"; self.wr = rg[0]; self.rd = set().union(*rg[1:])
        elif op.startswith(("buffer_store", "global_store")):
            self.cls = "vst"; self.rd = allr
            if op.endswith(("x3", "x4")):
                self.wide_store = rg[0] if op.startswith("buffer") else rg[1]
        elif op.startswith(("buffer_atomic", "global_atomic")):
            self.cls = "vld" if "sc0" in mods else "vst"
            self.rd = allr
            if "sc0" in mods:
                self.wr = rg[0]
        elif op.startswith(("buffer_wbl2", "buffer_inv")):
            self.cls = "vst"
        elif op.startswith(("s_load", "s_memtime", "s_memrealtime", "s_buffer_load")):
            self.cls = "smem"; self.wr = rg[0]; self.rd = set().union(*rg[1:]) if len(rg) > 1 else set()
        elif op == "s_waitcnt":
            self.cls = "wait"
        elif op == "s_nop":
            self.cls = "nop"
        elif op == "s_barrier":
            self.cls = "barrier"
        elif op.startswith(("s_branch", "s_cbranch", "s_endpgm", "s_setprio", "s_sleep")):
            self.cls = "ctrl"
        elif op.startswith("s_cmp"):
            self.cls = "salu"; self.rd = allr
        elif op.startswith("s_"):
            self.cls = "salu"; self.wr = set(rg[0]); self.rd = set().union(*rg[1:]) if len(rg) > 1 else set()
            if "saveexec" in op:
                self.wr |= {("s", "exec")}; self.rd |= {("s", "exec")}
        else:
            raise ValueError("unknown instruction " + t)

    def states(self):
        if self.cls == "nop":
            return int(self.ops[0]) + 1
        if self.cls in ("label", "pseudo"):
            return 0
        return 1


def wait_text(vm, lgkm):
    p = []
    if vm is not None: p.append(f"vmcnt({vm})")
    if lgkm is not None: p.append(f"lgkmcnt({lgkm})")
    return "s_waitcnt " + " ".join(p)


def _min(a, b):
    return b if a is None else min(a, b)


class Block:
    def __init__(self, name=None):
        self.name = name
        self.ins = []

    def add(self, x, comment=None):
        if isinstance(x, (list, tuple)):
            for y in x: self.add(y)
            return None
        if isinstance(x, str):
            x = I(x, comment)
        self.ins.append(x)
        return x

    __call__ = add


def vmwait(tag):
    i = I("@vmwait"); i.keep = tag
    return i


def tagged(text, tag):
    i = I(text); i.tag = tag
    return i


def expand(ins):
    out = []
    if ins.pre_vm is not None or ins.pre_lgkm is not None:
        out.append(I(wait_text(ins.pre_vm, ins.pre_lgkm)))
    n = ins.pre_nop
    while n > 0:
        k = min(n, 16)
        out.append(I(f"s_nop {k - 1}"))
        n -= k
    if ins.cls != "pseudo":
        out.append(ins)
    if ins.post_vm is not None or ins.post_lgkm is not None:
        out.append(I(wait_text(ins.post_vm, ins.post_lgkm)))
    return out


def parse_wait(ins):
    vm = lg = None
    m = re.search(r"vmcnt\((\d+)\)", ins.text)
    if m: vm = int(m.group(1))
    m = re.search(r"lgkmcnt\((\d+)\)", ins.text)
    if m: lg = int(m.group(1))
    return vm, lg


def insert_waits(trace, shadow=True):
    changed = False
    ds = []
    vm = []
    tags = {}
    vm_issued = 0
    seq = 0
    last_mfma = None

    def apply(vmn, lgn):
        nonlocal ds, vm
        if lgn is not None and len(ds) > lgn:
            if any(x[2] for x in ds) and lgn != 0:
                pass
            else:
                ds = ds[len(ds) - lgn:] if lgn else []
        if vmn is not None and len(vm) > vmn:
            vm = vm[len(vm) - vmn:] if vmn else []

    for b in trace:
        for ins in b.ins:
            seq += 1
            if ins.cls in ("label", "ctrl", "barrier"):
                last_mfma = None
            if ins.text == "@vmwait":
                if ins.keep in tags:
                    n = min(vm_issued - tags[ins.keep], 63)
                    if ins.pre_vm is None or n < ins.pre_vm:
                        ins.pre_vm = n; changed = True
                elif len(vm) > 0:
                    raise RuntimeError(f"vmwait on unknown tag {ins.keep}")
                apply(ins.pre_vm, None)
                continue
            apply(ins.pre_vm, ins.pre_lgkm)
            touch = ins.rd | ins.wr
            need = -1
            for p, (sq, rg, sm) in enumerate(ds):
                if rg & touch: need = p
            if need >= 0:
                anysm = any(x[2] for x in ds)
                if anysm:
                    n = 0
                    if ins.pre_lgkm != 0: ins.pre_lgkm = 0; changed = True
                    apply(None, 0)
                else:
                    sq = ds[need][0]
                    if shadow and last_mfma is not None and sq < last_mfma[1]:
                        n = min(15, sum(1 for x in ds[need + 1:] if x[0] < last_mfma[1]))
                        m = last_mfma[0]
                        if m.post_lgkm is None or n < m.post_lgkm:
                            m.post_lgkm = n; changed = True
                        ds = ds[need + 1:]
                    else:
                        n = min(15, len(ds) - 1 - need)
                        if ins.pre_lgkm is None or n < ins.pre_lgkm:
                            ins.pre_lgkm = n; changed = True
                        ds = ds[need + 1:]
            need = -1
            for p, (sq, rg) in enumerate(vm):
                if rg & touch: need = p
            if need >= 0:
                sq = vm[need][0]
                if shadow and last_mfma is not None and sq < last_mfma[1]:
                    n = sum(1 for x in vm[need + 1:] if x[0] < last_mfma[1])
                    n = min(n, 63)
                    m = last_mfma[0]
                    if m.post_vm is None or n < m.post_vm:
                        m.post_vm = n; changed = True
                else:
                    n = min(len(vm) - 1 - need, 63)
                    if ins.pre_vm is None or n < ins.pre_vm:
                        ins.pre_vm = n; changed = True
                vm = vm[need + 1:]
            if ins.cls == "wait":
                apply(*parse_wait(ins))
            elif ins.cls in ("dsr", "dsw"):
                ds.append((seq, set(ins.wr), False))
                assert len(ds) <= 15 or True
            elif ins.cls == "smem":
                ds.append((seq, set(ins.wr), True))
            elif ins.cls in ("vld", "vst", "dma"):
                vm.append((seq, set(ins.wr))); vm_issued += 1
                if ins.tag is not None: tags[ins.tag] = vm_issued
            if ins.cls == "mfma":
                last_mfma = (ins, seq)
                apply(ins.post_vm, ins.post_lgkm)
    return changed


def is_valu(x): return x.cls in ("valu", "trans")


def required(prod, cons):
    r = 0
    pv = {x for x in prod.wr if x[0] in "va"}
    ps = {x for x in prod.wr if x[0] == "s"}
    if is_valu(prod):
        if cons.cls == "mfma" and pv & cons.rd: r = max(r, 2)
        if cons.cls == "mfma" and ("s", "exec") in ps: r = max(r, 4)
        if prod.cls == "trans" and cons.cls == "valu" and pv & cons.rd: r = max(r, 1)
        if prod.cls == "trans" and cons.cls in ("vst", "dsw", "vld", "dsr", "dma") and pv & cons.rd: r = max(r, 1)
        if is_valu(cons):
            if ps & cons.rd:
                r = max(r, 4 if cons.op.startswith(("v_readlane", "v_writelane")) else 2)
            if cons.op.startswith(("v_readlane", "v_readfirstlane")) and pv & cons.rd: r = max(r, 1)
            if cons.op.startswith("v_permlane") and pv & cons.rd: r = max(r, 2)
            if ("dpp" in cons.mods or "row_" in cons.mods or "quad_perm" in cons.mods) and pv & cons.rd: r = max(r, 2)
        if cons.cls in ("vld", "vst", "dma") and ps & cons.rd: r = max(r, 5)
        if cons.cls in ("salu", "smem") and ps & cons.rd: r = max(r, 1)
    if prod.cls == "salu" and ("s", "m0") in prod.wr and cons.cls == "dma": r = max(r, 1)
    if prod.cls == "mfma":
        p = prod.passes
        if cons.cls == "mfma":
            if prod.wr & cons.srcC:
                if not (prod.wr == cons.srcC and p == cons.passes):
                    r = max(r, 6 if p == 4 else 10)
            if prod.wr & cons.srcAB: r = max(r, 8 if p == 4 else 12)
            if (prod.wr & cons.wr) and not (prod.wr & cons.srcC):
                r = max(r, 8 if p == 4 else 12)
        elif is_valu(cons) or cons.cls in ("vld", "vst", "dma", "dsr", "dsw"):
            if prod.wr & (cons.rd | cons.wr): r = max(r, 8 if p == 4 else 12)
            if is_valu(cons) and prod.srcC & cons.wr: r = max(r, 3 if p == 4 else 7)
    if prod.wide_store and prod.wide_store & cons.wr:
        r = max(r, 2 if is_valu(cons) else 1)
    return r


def insert_nops(trace):
    changed = False
    win = []
    pos = 0
    for b in trace:
        for ins in b.ins:
            seq = expand(ins)
            for x in seq:
                if x.cls in ("label", "pseudo"):
                    continue
                if x is ins:
                    need = 0
                    for (p, ppos) in win:
                        rq = required(p, x)
                        if rq:
                            dist = pos - ppos - 1
                            need = max(need, rq - dist)
                    if need > 0:
                        ins.pre_nop += need; pos += need; changed = True
                    win.append((x, pos))
                    pos += x.states()
                else:
                    pos += x.states()
                win = [(p, pp) for (p, pp) in win if pos - pp <= 24]
    return changed


def finalize(traces, shadow=True):
    for it in range(20):
        ch = False
        for t in traces:
            ch |= insert_waits(t, shadow)
        if not ch: break
    else:
        raise RuntimeError("waits did not converge")
    for it in range(20):
        ch = False
        for t in traces:
            ch |= insert_nops(t)
        if not ch: break
    else:
        raise RuntimeError("nops did not converge")


def emit(blocks):
    out = []
    for b in blocks:
        if b.name: out.append(f"; ---- {b.name}")
        for ins in b.ins:
            for x in expand(ins):
                if x.cls == "label":
                    out.append(x.text)
                else:
                    c = f"    ; {x.comment}" if x.comment else ""
                    out.append("    " + x.text + c)
    return "\n".join(out)


_ORDER = {"salu": 0, "pseudo": 0, "barrier": 0, "wait": 0, "ctrl": 3, "nop": 0,
          "dsr": 1, "dsw": 1, "dma": 1, "vld": 1, "vst": 1, "valu": 2, "trans": 2, "label": 3, "smem": 0}


def conflict(x, y):
    return bool((x.wr & (y.rd | y.wr)) or (y.wr & x.rd))


class Stream:
    def __init__(self):
        self.mf = []
        self.fill = {}

    def mfma(self, text):
        self.mf.append(I(text) if isinstance(text, str) else text)
        return len(self.mf) - 1

    def put(self, g, x):
        if isinstance(x, (list, tuple)):
            for y in x: self.put(g, y)
            return
        if isinstance(x, str): x = I(x)
        self.fill.setdefault(g, []).append(x)

    def cost(self, g):
        c = 0; nsc = 0
        for x in self.fill.get(g, []):
            if x.cls == "trans": c += 8
            elif x.cls in ("salu", "pseudo", "barrier", "wait", "ctrl", "nop"):
                nsc += 1
                if nsc > 1: c += 4
            elif x.cls == "valu" and x.op.startswith("v_permlane"): c += 8
            else: c += 4
        return c

    def spread(self, items, lo, hi, budget=8, step=1):
        g = lo
        for x in items:
            if isinstance(x, str): x = I(x)
            need = 8 if (x.cls == "trans" or (x.cls == "valu" and x.op.startswith("v_permlane"))) else 4
            while g < hi - 1 and (self.cost(g) + need > budget or
                                  any(_ORDER[y.cls] > _ORDER[x.cls] and conflict(x, y) for y in self.fill.get(g, []))):
                g += step
            self.put(min(g, hi - 1), x)
        return g

    def out(self, lo=0, hi=None, nomfma=()):
        hi = len(self.mf) if hi is None else hi
        res = []
        for g in range(lo, hi):
            if self.mf[g] is not None: res.append(self.mf[g])
            lst = self.fill.get(g, [])
            for i in range(len(lst)):
                for j in range(i + 1, len(lst)):
                    if _ORDER[lst[i].cls] > _ORDER[lst[j].cls] and conflict(lst[i], lst[j]):
                        raise RuntimeError(f"gap {g}: reorder conflict {lst[i].text} / {lst[j].text}")
            res += sorted(lst, key=lambda x: _ORDER[x.cls])
        return res


def descriptor(label, vgpr=512, accum=256, sgpr=102):
    return f""".p2align 6
.amdhsa_kernel {label}
  .amdhsa_next_free_vgpr {vgpr}
  .amdhsa_next_free_sgpr {sgpr}
  .amdhsa_accum_offset {accum}
  .amdhsa_group_segment_fixed_size 0
  .amdhsa_kernarg_size 96
  .amdhsa_user_sgpr_count 2
  .amdhsa_user_sgpr_kernarg_segment_ptr 1
  .amdhsa_system_sgpr_workgroup_id_x 1
.end_amdhsa_kernel"""


def header(label):
    return f".globl {label}\n.p2align 8\n.type {label},@function\n{label}:"
```

```python
import sys, struct, math
from asmgen import *

NAME = "recurrent_scan__mha_block_cached__glu_gated_bilinear__prompt"
XN_OFF, XN_SIZE = 0, 128 * 18 * 1024
AO_OFF, AO_SIZE = 0x400000, 128 * 128 * 1024
AH_OFF, AH_SIZE = 0x1400000, 128 * 144 * 1024
PT_OFF, PT_SIZE = 0x2800000, 4 * 2048 * 576 * 4


def f32(x):
    return "0x%08x" % struct.unpack("<I", struct.pack("<f", x))[0]


def srd(b, d, lo, hi, size, off=0):
    if off:
        b(f"s_add_u32 s{d}, s{lo}, {off}")
        b(f"s_addc_u32 s{d+1}, s{hi}, 0")
    else:
        b(f"s_mov_b32 s{d}, s{lo}")
        b(f"s_mov_b32 s{d+1}, s{hi}")
    b(f"s_mov_b32 s{d+2}, {size}")
    b(f"s_mov_b32 s{d+3}, 0x00020000")


def xlane_reduce(b, op, t, t2):
    b(f"v_mov_b32 v{t2}, v{t}")
    b(f"v_permlane16_swap_b32 v{t}, v{t2}")
    b(f"{op} v{t}, v{t}, v{t2}")
    b(f"v_mov_b32 v{t2}, v{t}")
    b(f"v_permlane32_swap_b32 v{t}, v{t2}")
    b(f"{op} v{t}, v{t}, v{t2}")


def gen_ln():
    L = "ln_kernel"
    b = Block("ln")
    b("s_cmp_ge_u32 s2, 128")
    b("s_cbranch_scc1 L_ln_end")
    b("s_load_dwordx2 s[4:5], s[0:1], 0")
    b("s_load_dwordx2 s[6:7], s[0:1], 88")
    b("v_and_b32 v1, 63, v0")
    b("v_lshrrev_b32 v2, 6, v0")
    b("v_and_b32 v3, 15, v1")
    b("v_lshrrev_b32 v4, 4, v1")
    b("s_lshl_b32 s3, s2, 4")
    b("v_add_u32 v5, s3, v3")
    b("v_mul_u32_u24 v5, 1152, v5")
    b("v_mul_u32_u24 v6, 192, v2")
    b("v_add_u32 v5, v5, v6")
    b("v_lshl_add_u32 v5, v4, 3, v5")
    srd(b, 8, 4, 5, 2048 * 1152)
    srd(b, 12, 6, 7, XN_SIZE, XN_OFF)
    for i in range(3):
        for h in range(2):
            b(f"buffer_load_dwordx2 v[{8+4*i+2*h}:{9+4*i+2*h}], v5, s[8:11], 0 offen offset:{i*64+h*32}")
    b("s_mul_i32 s3, s2, 18432")
    b("v_mul_u32_u24 v6, 3072, v2")
    b("v_lshl_add_u32 v6, v1, 4, v6")
    b("v_add_u32 v6, s3, v6")
    b("v_lshlrev_b32 v7, 5, v3")
    b("v_lshl_add_u32 v20, v2, 2, v7")
    X = 24
    for d in range(12):
        b(f"v_lshlrev_b32 v{X+2*d}, 16, v{8+d}")
        b(f"v_and_b32 v{X+2*d+1}, 0xffff0000, v{8+d}")
    b(f"v_add_f32 v21, v{X}, v{X+1}")
    b(f"v_add_f32 v22, v{X+2}, v{X+3}")
    for e in range(4, 24, 2):
        b(f"v_add_f32 v21, v21, v{X+e}")
        b(f"v_add_f32 v22, v22, v{X+e+1}")
    b("v_add_f32 v21, v21, v22")
    xlane_reduce(b, "v_add_f32", 21, 22)

    def wg_reduce(off):
        b(f"ds_write_b32 v20, v21 offset:{off}")
        b("s_waitcnt lgkmcnt(0)")
        b("s_barrier")
        b(f"ds_read_b128 v[8:11], v7 offset:{off}")
        b(f"ds_read_b64 v[12:13], v7 offset:{off+16}")
        b("v_add_f32 v8, v8, v9")
        b("v_add_f32 v10, v10, v11")
        b("v_add_f32 v12, v12, v13")
        b("v_add_f32 v8, v8, v10")
        b("v_add_f32 v21, v8, v12")
        b(f"v_mul_f32 v21, {f32(1.0/576)}, v21")
    wg_reduce(0)
    for e in range(24):
        b(f"v_sub_f32 v{X+e}, v{X+e}, v21")
    b(f"v_mul_f32 v21, v{X}, v{X}")
    b(f"v_mul_f32 v22, v{X+1}, v{X+1}")
    for e in range(2, 24, 2):
        b(f"v_fmac_f32 v21, v{X+e}, v{X+e}")
        b(f"v_fmac_f32 v22, v{X+e+1}, v{X+e+1}")
    b("v_add_f32 v21, v21, v22")
    xlane_reduce(b, "v_add_f32", 21, 22)
    wg_reduce(512)
    b(f"v_add_f32 v21, {f32(1e-5)}, v21")
    b("v_rsq_f32 v21, v21")
    for e in range(24):
        b(f"v_mul_f32 v{X+e}, v{X+e}, v21")
    for i in range(3):
        for d in range(4):
            b(f"v_cvt_pk_bf16_f32 v{8+4*i+d}, v{X+8*i+2*d}, v{X+8*i+2*d+1}")
        b(f"buffer_store_dwordx4 v[{8+4*i}:{11+4*i}], v6, s[12:15], 0 offen offset:{i*1024}")
    b("L_ln_end:")
    b("s_endpgm")
    finalize([[b]])
    return L, emit([b]), descriptor(L, vgpr=48, accum=48, sgpr=24), (128, 384, 1024)


MF = "v_mfma_f32_16x16x32_bf16"
vL16, vKA, vVA, vKO, vVO, vT = 1, 2, 6, 14, 18, 20
XV, ACC, AF = 32, 64, 192
vGO, vQO, vGA, vQA, vCUR, vXO = 216, 219, 222, 223, 226, 230
NEGM, LS = 224, 240
PB = (32, 192)
QSLOT = (2, 4, 6, 0)
SSLOT = (1, 3, 5, 7)
KF, VF = 128, 192
KRING, VRING = 98304, 32768
E0 = 17


def xn(ks, mb):
    f = ks * 4 + mb
    return A(4 * f, 4) if f < 64 else V(XV + 4 * (f - 64), 4)


def LB(s): return ((12 - s) % 4) * 36864
def kslot(t): return ((3 - t) % 4) * 16384
def Sreg(kb, qb): return ACC + 16 * SSLOT[kb] + 4 * qb
def Qreg(ks, qb): return ACC + 16 * QSLOT[ks] + 4 * qb
def Oreg(db, qb): return (db * 4 + qb) * 4


def dma_stage(s):
    out = []
    if s < 9:
        grp, third = divmod(s, 3)
        for a in range(3):
            sc = [f"s_add_u32 m0, s36, {LB(s) + a * 3072}",
                  f"s_add_u32 s52, s37, {(192 * third + 32 * a) * 9216 + grp * 96}"]
            d = [f"buffer_load_dwordx4 v{vGO+k}, s[12:15], s52 offen offset:{1024*k} lds" for k in range(3)]
            out.append((sc, d))
    else:
        ps, kh = divmod(s - 9, 2)
        for a in range(3):
            sc = [f"s_add_u32 m0, s38, {LB(s) + a * 3072}",
                  f"s_add_u32 s52, s39, {(288 * kh + 24 * a) * 8192 + ps * 128}"]
            d = [f"buffer_load_dwordx4 v{vQO+k}, s[16:19], s52 offen offset:{1024*k} lds" for k in range(3)]
            out.append((sc, d))
    last = out[-1][1]
    last[-1] = tagged(last[-1], f"p{s}")
    return out


def dma_k(t, soff):
    sc = [f"s_add_u32 m0, s40, {KRING + kslot(t)}"]
    d = [f"buffer_load_dwordx4 v{vKO+i}, s[20:23], {soff} offen offset:{1024*i} lds" for i in range(4)]
    return sc, d


def dma_v(t, soff):
    sc = [f"s_add_u32 m0, s40, {VRING + kslot(t)}"]
    d = [f"buffer_load_dwordx4 v{vVO+(i&1)}, s[24:27], {soff} offen offset:{1024*i} lds" for i in range(4)]
    return sc, d


def kread(t, kb, ks):
    return f"ds_read_b128 {A(KF+16*kb+4*ks,4)}, v{vKA+ks} offset:{kslot(t)+kb*4096}"


def vread(t, db, kk, h):
    return f"ds_read_b64_tr_b16 {A(VF+8*db+4*kk+2*h,2)}, v{vVA+db} offset:{kslot(t)+kk*8192+h*4096}"


def xn_load(ks, mb):
    so = "0" if ks < 4 else f"s{45 + ks // 4}"
    return f"buffer_load_dwordx4 {xn(ks, mb)}, v{vXO+mb}, s[8:11], {so} offen offset:{(ks % 4) * 1024}"


def put_dma(st, g, groups, step=2):
    for sc, d in groups:
        for k, x in enumerate(sc):
            st.put(g - 1 - (len(sc) - 1 - k), x)
        for x in d:
            st.put(g, x); g += step
        g += 1
    return g


def att_iter(u, first=False, last=False):
    st = Stream()
    j = u
    for kb in range(4):
        for qb in range(4):
            for ks in range(4):
                d = V(Sreg(kb, qb), 4)
                c = d if ks else V(NEGM + 4 * qb, 4)
                st.mfma(None if last else I(f"{MF} {d}, {A(KF+16*kb+4*ks,4)}, {V(Qreg(ks,qb),4)}, {c}"))
    for db in range(8):
        for qb in range(4):
            for kk in range(2):
                o = A(Oreg(db, qb), 4)
                st.mfma(None if first else I(f"{MF} {o}, {A(VF+8*db+4*kk,4)}, {V(PB[j%2]+16*kk+4*qb,4)}, {o}"))
    for x in range(128):
        for (tile_new, off) in ((True, 0), (False, 128)):
            if tile_new and last: continue
            if (not tile_new) and first: continue
            y = x + off - E0
            if y < 0 or y >= 128 + 1: continue
            pb = PB[(j + 1) % 2] if tile_new else PB[j % 2]
            if y % 2 == 0 and y < 128:
                e = y // 2; blk, r = divmod(e, 4); kb, qb = divmod(blk, 4)
                s = Sreg(kb, qb) + r
                st.put(x, f"v_exp_f32 v{s}, v{s}")
            if y % 2 == 1:
                e = y // 2; blk, r = divmod(e, 4); kb, qb = divmod(blk, 4)
                s = Sreg(kb, qb) + r
                st.put(x, f"v_add_f32 v{LS+qb}, v{LS+qb}, v{s}")
                if r % 2 == 1:
                    dst = pb + 16 * (kb // 2) + 4 * qb + 2 * (kb % 2) + r // 2
                    st.put(x, f"v_cvt_pk_bf16_f32 v{dst}, v{s-1}, v{s}")
    kpos = [110, 112, 114, 116] + [118 + 4 * i for i in range(12)]
    for n, g in enumerate(kpos):
        kb, ks = divmod(n, 4)
        if g < 128:
            if not last: st.put(g, kread(j + 2, kb, ks))
        else:
            if not last and not first: st.put(g - 128, kread(j + 1, kb, ks))
    if not first:
        n = 0
        for db in range(8):
            for kk in range(2):
                for h in range(2):
                    st.put(38 + 2 * n, vread(j, db, kk, h)); n += 1
    if not last:
        st.put(107, "s_waitcnt lgkmcnt(0)")
        st.put(108, vmwait(f"kv{(u + 1) % 4}"))
        st.put(108, "s_barrier")
        sc, d = dma_k(j + 5, "s41")
        st.put(119, sc[0])
        st.put(120, d[0]); st.put(124, d[1])
    if not first and not last:
        sc, d = dma_k(j + 4, "s41")
        st.put(0, d[2]); st.put(4, d[3])
        st.put(5, "s_add_u32 s41, s41, 16384")
        sc, d = dma_v(j + 3, "s42")
        st.put(7, sc[0])
        d[3] = tagged(d[3], f"kv{(u - 1) % 4}")
        for i in range(4): st.put(8 + 4 * i, d[i])
        st.put(21, "s_add_u32 s42, s42, 16384")
    return st


ST_OFF = 0x8000000


def gen_attn(dbg=False):
    L = "attn_kernel"
    nst = [0]
    def stamp():
        if not dbg: return []
        k = nst[0]; nst[0] += 1
        assert k < 11
        return [f"s_memtime s[{80+2*k}:{81+2*k}]"]
    su = Block("setup")
    b = su
    b("s_cmp_ge_u32 s2, 256")
    b("s_cbranch_scc1 L_at_end")
    b(stamp())
    if dbg: b("s_memrealtime s[78:79]")
    b("s_load_dwordx4 s[64:67], s[0:1], 8")
    b("s_load_dwordx2 s[68:69], s[0:1], 24")
    b("s_load_dwordx4 s[72:75], s[0:1], 48")
    b("s_load_dwordx2 s[76:77], s[0:1], 88")
    b("v_lshrrev_b32 v20, 6, v0")
    b("v_and_b32 v21, 63, v0")
    b("v_readfirstlane_b32 s3, v20")
    b("s_and_b32 s4, s2, 7")
    b("s_lshl_b32 s4, s4, 2")
    b("s_bfe_u32 s5, s2, 0x20003")
    b("s_add_u32 s4, s4, s5")
    b("s_lshr_b32 s5, s2, 5")
    b(f"v_lshlrev_b32 v{vL16}, 4, v21")
    for k in range(3):
        b(f"v_add_u32 v22, {64*k}, v21")
        b("v_mul_u32_u24 v23, 171, v22")
        b("v_lshrrev_b32 v23, 10, v23")
        b("v_mul_u32_u24 v24, 6, v23")
        b("v_sub_u32 v24, v22, v24")
        b("v_mul_u32_u24 v23, 9216, v23")
        b("v_lshl_add_u32 v23, v24, 4, v23")
        if k: b(f"v_subrev_u32 v{vGO+k}, {1024*k}, v23")
        else: b(f"v_mov_b32 v{vGO}, v23")
    b("s_lshr_b32 s52, s3, 1")
    b("s_and_b32 s53, s3, 1")
    b("s_mul_i32 s36, s3, 9216")
    b(f"s_mul_i32 s37, s53, {96*9216}")
    b("s_mul_i32 s54, s4, 288")
    b("s_add_u32 s37, s37, s54")
    b("s_mov_b32 s38, s36")
    b(f"s_mul_i32 s39, s3, {72*8192}")
    b("s_lshl_b32 s54, s4, 8")
    b("s_add_u32 s39, s39, s54")
    b("s_lshl_b32 s40, s3, 12")
    for i in range(1, 5): b(f"s_mov_b32 s{45+i}, {4096*i}")
    b("s_lshl_b32 s54, s5, 4")
    b("s_lshl_b32 s55, s3, 2")
    b("s_add_u32 s54, s54, s55")
    b("s_mul_i32 s55, s54, 18432")
    b(f"v_add_u32 v{vXO}, s55, v{vL16}")
    for mb in range(1, 4): b(f"v_add_u32 v{vXO+mb}, {18432*mb}, v{vXO}")
    b("s_mul_i32 s44, s54, 147456")
    b("s_lshl_b32 s45, s54, 17")
    b("s_lshl_b32 s55, s4, 12")
    b("s_add_u32 s45, s45, s55")
    b("s_waitcnt lgkmcnt(0)")
    b("s_cmp_eq_u32 s52, 0")
    b("s_cselect_b32 s12, s72, s74")
    b("s_cselect_b32 s13, s73, s75")
    b(f"s_mov_b32 s14, {576*9216}")
    b("s_mov_b32 s15, 0x00020000")
    srd(b, 8, 76, 77, XN_SIZE, XN_OFF)
    def issue(groups):
        for sc, d in groups:
            b(sc); b(d)
    issue(dma_stage(0))
    for ks in range(6):
        for mb in range(4): b(xn_load(ks, mb))
    issue(dma_stage(1))
    srd(b, 16, 68, 69, 576 * 8192)
    b("s_lshl_b32 s54, s4, 19")
    b("s_add_u32 s20, s64, s54"); b("s_addc_u32 s21, s65, 0")
    b("s_mov_b32 s22, 0x80000"); b("s_mov_b32 s23, 0x00020000")
    b("s_add_u32 s24, s66, s54"); b("s_addc_u32 s25, s67, 0")
    b("s_mov_b32 s26, 0x80000"); b("s_mov_b32 s27, 0x00020000")
    srd(b, 28, 76, 77, AO_SIZE, AO_OFF)
    srd(b, 32, 76, 77, AH_SIZE, AH_OFF)
    b(f"s_mov_b32 s51, {f32(128 ** -0.5 * math.log2(math.e))}")
    b("s_mov_b32 s60, 0")
    b("s_mul_i32 s56, s4, 9")
    b("v_and_b32 v22, 15, v21")
    b("v_lshrrev_b32 v23, 4, v21")
    b("v_lshrrev_b32 v24, 2, v22")
    b("v_and_b32 v25, 3, v21")
    b("v_lshrrev_b32 v26, 2, v21")
    b("v_mul_u32_u24 v27, 96, v26")
    b(f"v_lshl_add_u32 v{vGA}, v25, 3, v27")
    b("v_lshrrev_b32 v27, 1, v24")
    b("v_lshlrev_b32 v28, 7, v26")
    b("v_lshl_add_u32 v28, v25, 4, v28")
    b(f"v_lshl_add_u32 v{vQA}, v27, 6, v28")
    b(f"v_xor_b32 v{vQA+1}, 64, v{vQA}")
    b("v_lshrrev_b32 v27, 3, v21")
    b("v_and_b32 v28, 7, v21")
    b("v_lshlrev_b32 v29, 1, v27")
    b("v_and_b32 v29, 4, v29")
    b("v_xor_b32 v28, v28, v29")
    b("v_lshlrev_b32 v27, 13, v27")
    b(f"v_lshl_add_u32 v{vQO}, v28, 4, v27")
    for k in (1, 2): b(f"v_add_u32 v{vQO+k}, {k*(65536-1024)}, v{vQO}")
    b(f"v_lshlrev_b32 v27, 8, v22")
    b(f"v_add_u32 v27, {KRING}, v27")
    for ks in range(4):
        b(f"v_add_u32 v28, {4*ks}, v23")
        b("v_xor_b32 v28, v28, v22")
        b(f"v_lshl_add_u32 v{vKA+ks}, v28, 4, v27")
    b("v_lshlrev_b32 v27, 8, v26")
    b("v_lshl_add_u32 v27, v25, 3, v27")
    b(f"v_add_u32 v27, {VRING}, v27")
    b("v_and_b32 v29, 7, v26")
    for db in range(8):
        b(f"v_xor_b32 v28, {db}, v29")
        b(f"v_lshl_add_u32 v{vVA+db}, v28, 5, v27")
    b("v_lshlrev_b32 v27, 8, v23")
    for i in range(4):
        b(f"v_add_u32 v28, {4*i}, v23")
        b("v_xor_b32 v28, v28, v22")
        b(f"v_lshl_add_u32 v{vKO+i}, v28, 4, v27")
    for i in range(2):
        b(f"v_add_u32 v28, {4*i}, v23")
        b("v_lshlrev_b32 v28, 1, v28")
        b("v_xor_b32 v28, v28, v22")
        b(f"v_lshl_add_u32 v{vVO+i}, v28, 4, v27")

    st = Stream()
    groups = []
    slot = 0
    pairs = []
    for grp in range(3):
        slots = [(slot + i) % 8 for i in range(6)]; slot = (slot + 6) % 8
        for third in range(3):
            s = grp * 3 + third
            for p in range(3):
                for mat in range(2):
                    for ch in range(2):
                        loc = [3 * ch + i for i in range(3)]
                        groups.append(dict(s=s, kind="gu", slot=slots[2*p+mat], mat=mat, blk=p, grp=grp,
                                           loc=loc, ks=[6 * third + x for x in loc]))
    for ps in range(2):
        slots = [(slot + i) % 8 for i in range(4)]; slot = (slot + 4) % 8
        for kh in range(2):
            s = 9 + 2 * ps + kh
            for kap in range(2):
                for beta in range(2):
                    for ch in range(3):
                        loc = [3 * ch + i for i in range(3)]
                        groups.append(dict(s=s, kind="q", slot=slots[2*kap+beta], kap=kap, beta=beta, ps=ps,
                                           loc=loc, ks=[9 * kh + x for x in loc]))
                assert slots[2 * kap] == QSLOT[2 * ps + kap]

    def cur(s, k=0): return vCUR + 2 * (s % 2) + k

    def reads_of(i):
        G = groups[i]; o = []
        for t, kl in enumerate(G["loc"]):
            for h in range(2):
                dst = V(AF + 12 * (i % 2) + 4 * t + 2 * h, 2)
                if G["kind"] == "gu":
                    off = G["mat"] * 18432 + kl * 3072 + G["blk"] * 32 + h * 1536
                    o.append(f"ds_read_b64_tr_b16 {dst}, v{cur(G['s'])} offset:{off}")
                else:
                    off = kl * 4096 + G["beta"] * 8 + h * 2048
                    o.append(f"ds_read_b64_tr_b16 {dst}, v{cur(G['s'], G['kap'])} offset:{off}")
        return o

    def addr_of(s):
        if s < 9: return [f"v_add_u32 v{cur(s)}, {LB(s)}, v{vGA}"]
        return [f"v_add_u32 v{cur(s,k)}, {LB(s)}, v{vQA+k}" for k in range(2)]

    for i, G in enumerate(groups):
        for mb in range(4):
            for t, ks in enumerate(G["ks"]):
                d = V(ACC + 16 * G["slot"] + 4 * mb, 4)
                st.mfma(f"{MF} {d}, {V(AF+12*(i%2)+4*t,4)}, {xn(ks, mb)}, {d if ks else 0}")
    NG = len(groups)
    for i in range(1, NG):
        g0 = 12 * (i - 1)
        newstage = groups[i]["s"] != groups[i - 1]["s"]
        if newstage:
            s = groups[i]["s"]
            st.put(g0 - 6, addr_of(s))
            st.put(g0, vmwait(f"p{s}"))
            st.put(g0, "s_barrier")
            g0 += 1
        for k, x in enumerate(reads_of(i)):
            st.put(g0 + k, x)
    def free_gaps(lo, hi):
        return [g for g in range(lo, hi) if 7 <= g % 12 <= 11]
    def put_list(items, lo, hi):
        fg = free_gaps(lo, hi); k = 0; pend = []; lastg = lo - 1
        for kind, x in items:
            if kind == "s": pend.append(x); continue
            if pend:
                while fg[k] - 1 <= lastg: k += 1
                for y in pend: st.put(fg[k] - 1, y)
                pend = []
            g = fg[k]; k += 1
            st.put(g, x); lastg = g
        return lastg + 1
    def flat(groups_):
        o = []
        for sc, d in groups_:
            o += [("s", x) for x in sc] + [("m", x) for x in d]
        return o
    it = [("m", xn_load(ks, mb)) for ks in range(6, 12) for mb in range(4)] + flat(dma_stage(2))
    put_list(it, 2, 132)
    sc, d = dma_k(0, "s40"); d[3] = tagged(d[3], "k0")
    it = [("m", xn_load(ks, mb)) for ks in range(12, 18) for mb in range(4)] + flat(dma_stage(3)) + flat(dma_stage(4)) + flat([(sc, d)])
    put_list(it, 144 - 8, 144 + 132)
    for s in range(1, 9):
        put_list(flat(dma_stage(s + 4)), 144 * s + 136, 144 * (s + 1) + 60)
    def kvgroup(n, tag):
        sk, dk = dma_k(n + 1, "s52"); sv, dv = dma_v(n, "s53")
        dv[3] = tagged(dv[3], tag)
        return [([f"s_add_u32 s52, s40, {16384*(n+1)}"] + sk, dk), ([f"s_add_u32 s53, s40, {16384*n}"] + sv, dv)]
    put_list(flat(kvgroup(0, "kv0")), 144 * 10 + 136, 144 * 11 + 60)
    put_list(flat(kvgroup(1, "kv1")) + flat(kvgroup(2, "kv2")), 144 * 11 + 136, 144 * 12 + 100)
    tail_items = []
    for i, G in enumerate(groups):
        if G["ks"][-1] != 17: continue
        g0 = 12 * (i + 1) + 1
        items = []
        if G["kind"] == "gu":
            if G["mat"] == 0: continue
            us = ACC + 16 * G["slot"]; gs = ACC + 16 * groups[i - 2]["slot"]
            fb = 3 * G["grp"] + G["blk"]
            items += [f"s_add_u32 s57, s56, {fb}", "s_lshr_b32 s58, s57, 1", "s_lshl_b32 s58, s58, 10",
                      "s_and_b32 s57, s57, 1", "s_lshl_b32 s57, s57, 3", "s_add_u32 s58, s58, s57", "s_add_u32 s58, s58, s44"]
            for n, x in enumerate(items): st.put(g0 - 9 + n, x)
            items = []
            for mb in range(4):
                for r in range(4): items.append(f"v_mul_f32 v{gs+4*mb+r}, v{gs+4*mb+r}, v{us+4*mb+r}")
                items.append(f"v_cvt_pk_bf16_f32 v{gs+4*mb}, v{gs+4*mb}, v{gs+4*mb+1}")
                items.append(f"v_cvt_pk_bf16_f32 v{gs+4*mb+1}, v{gs+4*mb+2}, v{gs+4*mb+3}")
                items.append(f"s_add_u32 s59, s58, {147456*mb}")
                items.append(f"buffer_store_dwordx2 {V(gs+4*mb,2)}, v{vL16}, s[32:35], s59 offen")
        else:
            me = ACC + 16 * G["slot"]
            dst = me if G["beta"] == 0 else ACC + 16 * groups[i - 3]["slot"] + 2
            for mb in range(4):
                for r in range(4): items.append(f"v_mul_f32 v{me+4*mb+r}, s51, v{me+4*mb+r}")
                items.append(f"v_cvt_pk_bf16_f32 v{dst+4*mb}, v{me+4*mb}, v{me+4*mb+1}")
                items.append(f"v_cvt_pk_bf16_f32 v{dst+4*mb+1}, v{me+4*mb+2}, v{me+4*mb+3}")
        if i == NG - 1:
            tail_items = items
        else:
            st.spread(items, g0, g0 + 35)
    st.spread([f"v_accvgpr_write_b32 a{i}, 0" for i in range(128)], 144 * 12 + 1, 144 * 13)
    for ks in range(4): st.put(144 * 12 + 133 + ks, kread(0, 0, ks))

    b(addr_of(0))
    b(vmwait("p0"))
    b("s_barrier")
    b(stamp())
    b(reads_of(0))
    for s_ in (1, 3, 9): st.put(144 * s_, stamp())
    pj = Block("projection")
    pj(st.out())

    mp = Block("mini prologue")
    b = mp
    b(stamp())
    for n in range(4, 16): b(kread(0, n // 4, n % 4))
    b(tail_items)
    for qb in range(4):
        for ks in range(4):
            d = V(Sreg(0, qb), 4)
            b(f"{MF} {d}, {A(KF+4*ks,4)}, {V(Qreg(ks,qb),4)}, {d if ks else 0}")
    b("s_add_u32 s41, s40, 65536")
    b("s_add_u32 s42, s40, 49152")
    for qb in range(4): b(f"v_mov_b32 v{LS+qb}, 0")
    for qb in range(4):
        s = Sreg(0, qb)
        b(f"v_max3_f32 v{vT+qb}, v{s}, v{s+1}, v{s+2}")
        b(f"v_max_f32 v{vT+qb}, v{vT+qb}, v{s+3}")
    ng = Block("negm")
    b = ng
    b("L_at_negm:")
    for op in ("v_permlane16_swap_b32", "v_permlane32_swap_b32"):
        for qb in range(4): b(f"v_mov_b32 v{vT+4+qb}, v{vT+qb}")
        for qb in range(4): b(f"{op} v{vT+qb}, v{vT+4+qb}")
        for qb in range(4): b(f"v_max_f32 v{vT+qb}, v{vT+qb}, v{vT+4+qb}")
    for qb in range(4):
        for r in range(4): b(f"v_sub_f32 v{NEGM+4*qb+r}, 0, v{vT+qb}")
    b("s_mov_b32 s43, 0")

    b(stamp())
    pre = Block("iteration -1"); pre(att_iter(3, first=True).out())
    pre(stamp())
    its = []
    for u in range(4):
        bl = Block(f"iteration {u}")
        stu = att_iter(u)
        if u == 0: bl("L_at_loop:")
        if u == 2:
            stu.put(125, "s_add_u32 s43, s43, 1")
            stu.put(126, "s_cmp_eq_u32 s43, 8")
            stu.put(127, "s_cbranch_scc1 L_at_tail")
        if u == 3:
            stu.put(127, "s_branch L_at_loop")
        bl(stu.out())
        its.append(bl)
    tail = Block("tail iteration")
    tail("L_at_tail:")
    tail(stamp())
    tail(att_iter(3, last=True).out())

    ep = Block("epilogue")
    b = ep
    b(stamp())
    for op in ("v_permlane16_swap_b32", "v_permlane32_swap_b32"):
        for qb in range(4): b(f"v_mov_b32 v{vT+qb}, v{LS+qb}")
        for qb in range(4): b(f"{op} v{LS+qb}, v{vT+qb}")
        for qb in range(4): b(f"v_add_f32 v{LS+qb}, v{LS+qb}, v{vT+qb}")
    for qb in range(4): b(f"v_rcp_f32 v{vT+qb}, v{LS+qb}")
    T0 = 32
    n = 0
    for i in range(4):
        for qb in range(4):
            t = T0 + 8 * (n % 4); dd = 192 + 4 * (n % 8); n += 1
            for k in range(8):
                b(f"v_accvgpr_read_b32 v{t+k}, a{Oreg(2*i + k // 4, qb) + k % 4}")
            for k in range(8):
                b(f"v_mul_f32 v{t+k}, v{t+k}, v{vT+qb}")
            for k in range(4):
                b(f"v_cvt_pk_bf16_f32 v{dd+k}, v{t+2*k}, v{t+2*k+1}")
            b(f"s_add_u32 s52, s45, {qb * 131072}")
            b(f"buffer_store_dwordx4 {V(dd,4)}, v{vL16}, s[28:31], s52 offen offset:{i*1024}")
    if dbg:
        b("s_waitcnt vmcnt(0)")
        b(stamp())
        b("s_memrealtime s[62:63]")
        b("s_waitcnt lgkmcnt(0)")
        b("s_lshl_b32 s52, s2, 2")
        b("s_add_u32 s52, s52, s3")
        b("s_lshl_b32 s52, s52, 6")
        srd(b, 64, 76, 77, 1024 * 64, ST_OFF)
        b("v_mov_b32 v32, s52")
        for k in range(11):
            b(f"v_mov_b32 v33, s{80+2*k}")
            b(f"buffer_store_dword v33, v32, s[64:67], 0 offen offset:{4*k}")
        b("v_mov_b32 v33, s78")
        b(f"buffer_store_dword v33, v32, s[64:67], 0 offen offset:48")
        b("v_mov_b32 v33, s62")
        b(f"buffer_store_dword v33, v32, s[64:67], 0 offen offset:52")
    b("s_cmp_eq_u32 s60, 1")
    b("s_cbranch_scc1 L_at_end")
    b(f"v_add_f32 v{vT+5}, v{LS}, v{LS+1}")
    b(f"v_add_f32 v{vT+6}, v{LS+2}, v{LS+3}")
    b(f"v_add_f32 v{vT+5}, v{vT+5}, v{vT+6}")
    b(f"s_mov_b32 s52, {f32(2.0 ** 40)}")
    b(f"v_cmp_nge_f32 vcc, s52, v{vT+5}")
    b("s_cmp_lg_u64 vcc, 0")
    b("s_cselect_b32 s52, 1, 0")
    b(f"v_mov_b32 v{vT+6}, s52")
    b("s_lshl_b32 s53, s3, 2")
    b(f"v_mov_b32 v{vT+7}, s53")
    b(f"ds_write_b32 v{vT+7}, v{vT+6}")
    b(f"v_mov_b32 v{vT+7}, 0")
    b("s_waitcnt lgkmcnt(0)")
    b("s_barrier")
    b(f"ds_read_b128 {V(vT+8,4)}, v{vT+7}")
    b(f"v_or_b32 v{vT+8}, v{vT+8}, v{vT+9}")
    b(f"v_or3_b32 v{vT+8}, v{vT+8}, v{vT+10}, v{vT+11}")
    b(f"v_readfirstlane_b32 s52, v{vT+8}")
    b("s_cmp_eq_u32 s52, 0")
    b("s_cbranch_scc1 L_at_end")
    fb0 = Block("fallback")
    b = fb0
    b("s_waitcnt vmcnt(0)")
    b("s_mov_b32 s60, 1")
    b("s_mov_b32 s41, s40")
    b("s_mov_b32 s43, 0")
    for qb in range(4): b(f"v_mov_b32 v{vT+qb}, 0xff800000")
    fbl = Block("fallback loop")
    b = fbl
    b("L_at_fb:")
    b("s_barrier")
    sc, d = dma_k(0, "s41")
    b(sc); b(d)
    b("s_add_u32 s41, s41, 16384")
    b("s_waitcnt vmcnt(0)")
    b("s_barrier")
    for n in range(16): b(kread(0, n // 4, n % 4))
    for kb in range(4):
        for qb in range(4):
            for ks in range(4):
                d = V(Sreg(kb, qb), 4)
                b(f"{MF} {d}, {A(KF+16*kb+4*ks,4)}, {V(Qreg(ks,qb),4)}, {d if ks else 0}")
    for kb in range(4):
        for qb in range(4):
            s = Sreg(kb, qb)
            b(f"v_max3_f32 v{vT+qb}, v{vT+qb}, v{s}, v{s+1}")
            b(f"v_max3_f32 v{vT+qb}, v{vT+qb}, v{s+2}, v{s+3}")
    b("s_add_u32 s43, s43, 1")
    b("s_cmp_lt_u32 s43, 32")
    b("s_cbranch_scc1 L_at_fb")
    fb1 = Block("fallback restart")
    b = fb1
    b("s_barrier")
    sc, d = dma_k(0, "s40"); b(sc); b(d)
    for n in range(3):
        for sc, d in kvgroup(n, f"kv{n}"):
            b(sc); b(d)
    b("s_add_u32 s41, s40, 65536")
    b("s_add_u32 s42, s40, 49152")
    for i in range(128): b(f"v_accvgpr_write_b32 a{i}, 0")
    for qb in range(4): b(f"v_mov_b32 v{LS+qb}, 0")
    b("s_waitcnt vmcnt(0)")
    b("s_barrier")
    for n in range(16): b(kread(0, n // 4, n % 4))
    b("s_waitcnt lgkmcnt(0)")
    b("s_branch L_at_negm")
    end = Block(None)
    end("L_at_end:")
    end("s_endpgm")

    main = [su, pj, mp, ng, pre] + its + its + its[:3] + [tail, ep]
    fb = [ep, fb0, fbl, fbl, fb1, ng, pre] + its + its[:3] + [tail, ep]
    finalize([main, fb])
    blocks = [su, pj, mp, ng, pre] + its + [tail, ep, fb0, fbl, fb1, end]
    return L, emit(blocks), descriptor(L), (256, 256, 163840)


def gen_out():
    L = "outproj_kernel"
    vL, vRA, vDO = 1, 2, 6
    AFR = 16
    BFR = 48
    su = Block("setup"); b = su
    b("s_cmp_ge_u32 s2, 256")
    b("s_cbranch_scc1 L_op_end")
    b("s_load_dwordx2 s[64:65], s[0:1], 32")
    b("s_load_dwordx2 s[66:67], s[0:1], 64")
    b("s_load_dwordx2 s[68:69], s[0:1], 88")
    b("v_lshrrev_b32 v20, 6, v0")
    b("v_and_b32 v21, 63, v0")
    b("v_readfirstlane_b32 s3, v20")
    b("s_bfe_u32 s4, s2, 0x20001")
    b("s_and_b32 s5, s2, 1")
    b("s_lshl_b32 s5, s5, 3")
    b("s_lshr_b32 s6, s2, 5")
    b("s_add_u32 s5, s5, s6")
    b("s_bfe_u32 s6, s2, 0x20003")
    b(f"v_lshlrev_b32 v{vL}, 4, v21")
    for i in range(9):
        b(f"v_add_u32 v22, {64*i}, v21")
        b("v_mul_u32_u24 v23, 3641, v22")
        b("v_lshrrev_b32 v23, 16, v23")
        b("v_mul_u32_u24 v24, 18, v23")
        b("v_sub_u32 v24, v22, v24")
        b("v_mul_u32_u24 v23, 1152, v23")
        b("v_lshl_add_u32 v23, v24, 4, v23")
        b(f"v_subrev_u32 v{vDO+i}, {1024*(i%4)}, v23")
    b("s_and_b32 s7, s4, 1")
    b("s_cmp_lt_u32 s4, 2")
    b("s_cselect_b32 s36, 64, 72")
    b(f"s_mov_b32 s38, {AO_OFF}")
    b(f"s_cselect_b32 s38, s38, {AH_OFF}")
    b("s_lshl_b32 s37, s36, 1")
    b("s_mul_i32 s39, s7, s36")
    b("s_lshl_b32 s40, s5, 3")
    b("s_lshl_b32 s41, s3, 1")
    b("s_add_u32 s40, s40, s41")
    b("s_mul_i32 s41, s40, s37")
    b("s_add_u32 s41, s41, s39")
    b("s_lshl_b32 s41, s41, 10")
    b("s_add_u32 s41, s41, s38")
    b("s_lshl_b32 s42, s37, 10")
    b("s_add_u32 s42, s42, s41")
    b("s_add_u32 s43, s39, s36")
    b(f"s_mul_i32 s43, s43, {32*1152}")
    b("s_add_u32 s44, s39, s3")
    b(f"s_mul_i32 s44, s44, {32*1152}")
    b("s_mul_i32 s45, s6, 288")
    b("s_add_u32 s44, s44, s45")
    b("s_mul_i32 s45, s3, 9216")
    b("s_mov_b32 s46, 0")
    b("s_lshr_b32 s47, s36, 3")
    b("s_waitcnt lgkmcnt(0)")
    b("s_cmp_lt_u32 s4, 2")
    b("s_cselect_b32 s8, s64, s66")
    b("s_cselect_b32 s9, s65, s67")
    b("s_mov_b32 s10, s43")
    b("s_mov_b32 s11, 0x00020000")
    for mb in range(2):
        b(f"s_add_u32 s{12+4*mb}, s68, s{41+mb}")
        b(f"s_addc_u32 s{13+4*mb}, s69, 0")
        b(f"s_lshl_b32 s{14+4*mb}, s36, 10")
        b(f"s_mov_b32 s{15+4*mb}, 0x00020000")

    def dma(u):
        o = []
        for i in range(9):
            if i % 4 == 0: o.append(("s", f"s_add_u32 m0, s45, {u*36864 + i*1024}"))
            t = f"buffer_load_dwordx4 v{vDO+i}, s[8:11], s44 offen offset:{1024*(i%4)} lds"
            o.append(("m", tagged(t, f"w{u}") if i == 8 else t))
        o.append(("s", f"s_add_u32 s44, s44, {128*1152}"))
        return o

    def bfrag(u, mb, ks): return V(BFR + 32 * u + 16 * mb + 4 * ks, 4)

    def bload(u):
        o = []
        for ks in range(4):
            for mb in range(2):
                o.append(("m", f"buffer_load_dwordx4 {bfrag(u, mb, ks)}, v{vL}, s[{12+4*mb}:{15+4*mb}], s46 offen offset:{1024*ks}"))
        o.append(("s", "s_add_u32 s46, s46, 4096"))
        return o

    for u in range(3):
        for k, x in dma(u) + bload(u): b(x)
    b("v_lshrrev_b32 v22, 2, v21")
    b("v_and_b32 v23, 3, v21")
    b("v_mul_u32_u24 v22, 288, v22")
    b(f"v_lshl_add_u32 v{vRA}, v23, 3, v22")
    for u in range(1, 4): b(f"v_add_u32 v{vRA+u}, {36864*u}, v{vRA}")
    srd(b, 20, 68, 69, PT_SIZE, PT_OFF)
    b("s_lshl_b32 s48, s4, 4")
    b("s_add_u32 s48, s48, s5")
    b("s_lshl_b32 s48, s48, 2")
    b("s_add_u32 s48, s48, s6")
    b("s_lshl_b32 s48, s48, 2")
    b("s_add_u32 s48, s48, s3")
    b("s_mul_i32 s48, s48, 18432")
    for i in range(72): b(f"v_accvgpr_write_b32 a{i}, 0")

    LEAD = 2
    def areads(u, gi):
        kp, nb = divmod(gi, 9)
        o = []
        for t in range(2):
            for h in range(2):
                n = (u * 18 + gi) % 4
                o.append(f"ds_read_b64_tr_b16 {V(AFR+8*n+4*t+2*h,2)}, v{vRA+u} offset:{(2*kp+t)*9216 + h*4608 + nb*32}")
        return o

    b(vmwait("w0"))
    b("s_barrier")
    for gi in range(LEAD): b(areads(0, gi))

    its = []
    for u in range(4):
        st = Stream()
        for gi in range(18):
            kp, nb = divmod(gi, 9)
            n = (u * 18 + gi) % 4
            for mb in range(2):
                for t in range(2):
                    d = A((nb * 2 + mb) * 4, 4)
                    st.mfma(f"{MF} {d}, {V(AFR+8*n+4*t,4)}, {bfrag(u, mb, 2*kp+t)}, {d}")
        for gi in range(18):
            g2 = gi + LEAD
            rd = areads(u, g2) if g2 < 18 else areads((u + 1) % 4, g2 - 18)
            g0 = 4 * gi
            if g2 == 18:
                st.put(g0, "s_waitcnt lgkmcnt(0)")
                st.put(g0, vmwait(f"w{(u+1)%4}"))
                st.put(g0, "s_barrier")
            for k, x in enumerate(rd): st.put(g0 + k, x)
        g = 1
        for kind, x in dma((u + 3) % 4) + bload((u + 3) % 4):
            if kind == "s":
                st.put(g, x); g += 1
            else:
                st.put(g, x); g += 2 if g < 40 else 2
        assert g < 64, g
        bl = Block(f"stage {u}")
        if u == 0: bl("L_op_loop:")
        if u % 2 == 1:
            st.put(69, "s_sub_u32 s47, s47, 1")
            st.put(70, "s_cmp_eq_u32 s47, 0")
            st.put(71, "s_cbranch_scc1 L_op_done")
        if u == 3: st.put(71, "s_branch L_op_loop")
        bl(st.out())
        its.append(bl)
    ep = Block("epilogue"); b = ep
    b("L_op_done:")
    for mb in range(2):
        for nb in range(9):
            k = mb * 9 + nb
            if k % 4 == 0: b(f"s_add_u32 s49, s48, {k*1024}")
            b(f"buffer_store_dwordx4 {A((nb*2+mb)*4,4)}, v{vL}, s[20:23], s49 offen offset:{(k%4)*1024}")
    b("L_op_end:")
    b("s_endpgm")
    finalize([[su] + its + its + [ep], [su] + its + its[:2] + [ep]])
    return L, emit([su] + its + [ep]), descriptor(L, vgpr=256, accum=176), (256, 256, 147456)


def gen_fin():
    L = "final_kernel"
    b = Block("final")
    b("s_cmp_ge_u32 s2, 384")
    b("s_cbranch_scc1 L_fin_end")
    b("s_load_dwordx2 s[4:5], s[0:1], 0")
    b("s_load_dwordx2 s[6:7], s[0:1], 72")
    b("s_load_dwordx2 s[20:21], s[0:1], 88")
    b("v_lshrrev_b32 v2, 6, v0")
    b("v_and_b32 v1, 63, v0")
    b("v_readfirstlane_b32 s3, v2")
    b("s_lshl_b32 s22, s2, 2")
    b("s_add_u32 s22, s22, s3")
    b("s_mul_i32 s23, s22, 43691")
    b("s_lshr_b32 s23, s23, 17")
    b("s_mul_i32 s24, s23, 3")
    b("s_sub_u32 s24, s22, s24")
    b("s_mul_i32 s25, s22, 3072")
    b("s_lshr_b32 s26, s23, 5")
    b("s_bfe_u32 s27, s23, 0x20003")
    b("s_and_b32 s28, s23, 7")
    b("s_lshl_b32 s26, s26, 3")
    b("s_add_u32 s26, s26, s28")
    b(f"s_mul_i32 s26, s26, {16*1152}")
    b("s_mul_i32 s27, s27, 288")
    b("s_add_u32 s26, s26, s27")
    b("s_mul_i32 s27, s24, 96")
    b("s_add_u32 s26, s26, s27")
    b("v_lshlrev_b32 v3, 4, v1")
    b("v_and_b32 v4, 15, v1")
    b("v_lshrrev_b32 v5, 4, v1")
    b("v_mul_u32_u24 v4, 1152, v4")
    b("v_lshl_add_u32 v4, v5, 3, v4")
    b("s_waitcnt lgkmcnt(0)")
    srd(b, 8, 4, 5, 2048 * 1152)
    srd(b, 12, 6, 7, 2048 * 1152)
    srd(b, 16, 20, 21, PT_SIZE, PT_OFF)
    for sp in range(4):
        if sp: b(f"s_add_u32 s25, s25, {2048*576*4}")
        for i in range(3):
            b(f"buffer_load_dwordx4 {V(8+16*i+4*sp,4)}, v3, s[16:19], s25 offen offset:{1024*i}")
    for i in range(3):
        b(f"buffer_load_dwordx2 {V(56+2*i,2)}, v4, s[8:11], s26 offen offset:{32*i}")
    b(f"s_mov_b32 s29, {f32(-math.log2(math.e))}")
    for i in range(3):
        p = 8 + 16 * i
        for r in range(4): b(f"v_add_f32 v{p+r}, v{p+r}, v{p+4+r}")
        for r in range(4): b(f"v_add_f32 v{p+8+r}, v{p+8+r}, v{p+12+r}")
        for r in range(4): b(f"v_mul_f32 v{p+4+r}, s29, v{p+8+r}")
        for r in range(4): b(f"v_exp_f32 v{p+4+r}, v{p+4+r}")
        for r in range(4): b(f"v_add_f32 v{p+4+r}, 1.0, v{p+4+r}")
        for r in range(4): b(f"v_rcp_f32 v{p+4+r}, v{p+4+r}")
        for r in range(4): b(f"v_mul_f32 v{p+8+r}, v{p+8+r}, v{p+4+r}")
        xx = 56 + 2 * i
        b(f"v_lshlrev_b32 v{p+12}, 16, v{xx}")
        b(f"v_and_b32 v{p+13}, 0xffff0000, v{xx}")
        b(f"v_lshlrev_b32 v{p+14}, 16, v{xx+1}")
        b(f"v_and_b32 v{p+15}, 0xffff0000, v{xx+1}")
        for r in range(4): b(f"v_fmac_f32 v{p+12+r}, v{p+r}, v{p+8+r}")
        b(f"v_cvt_pk_bf16_f32 v{xx}, v{p+12}, v{p+13}")
        b(f"v_cvt_pk_bf16_f32 v{xx+1}, v{p+14}, v{p+15}")
        b(f"buffer_store_dwordx2 {V(xx,2)}, v4, s[12:15], s26 offen offset:{32*i}")
    b("L_fin_end:")
    b("s_endpgm")
    finalize([[b]])
    return L, emit([b]), descriptor(L, vgpr=64, accum=64, sgpr=32), (384, 256, 0)


def build(kernels):
    hdr = open("cdna_kernels/" + NAME + ".s.ref").read().split("; Override launch")[0]
    out = [hdr.rstrip()]
    for L, code, desc, (g, blk, lds) in kernels:
        out.append(f"; @launch kernel={L} grid=({g},1,1) block=({blk},1,1) lds={lds}")
    out.append('.amdgcn_target "amdgcn-amd-amdhsa--gfx950"\n.text')
    for L, code, desc, _ in kernels:
        out.append(header(L)); out.append(code)
    out.append('.section .rodata,"a"')
    for L, code, desc, _ in kernels:
        out.append(desc)
    return "\n".join(out) + "\n"


if __name__ == "__main__":
    dbg = len(sys.argv) > 2 and sys.argv[2] == "dbg"
    ks = [gen_ln(), gen_attn(dbg), gen_out(), gen_fin()]
    open(sys.argv[1], "w").write(build(ks))
```
